```python
import torch

def _softmax(x, axis=-1):
    return torch.softmax(x, dim=axis)
def _gelu(x):
    return torch.nn.functional.gelu(x, approximate="tanh")
def _silu(x):
    return torch.nn.functional.silu(x)
def _sigmoid(x):
    return torch.sigmoid(x)
def _layernorm(x, axis=-1, eps=1e-5):
    m = x.mean(dim=axis, keepdim=True)
    v = x.var(dim=axis, keepdim=True, unbiased=False)
    return (x - m) / torch.sqrt(v + eps)
def _scatter_add(tgt, idx, src, axis=0):
    return tgt.clone().index_add_(axis, idx, src)
def _segment_sum(src, seg, n):
    out = torch.zeros((n,) + src.shape[1:], dtype=src.dtype)
    return out.index_add_(0, seg, src)
def _pad(x, pw):
    flat = tuple(v for pair in reversed(pw) for v in pair)
    return torch.nn.functional.pad(x, flat)

kernel_name = 'sequential_preLN__sliding_local_dilated__swiglu_ffn__prompt'

def setup_inputs():

    _w = (lambda a: (lambda t: t.to(torch.bfloat16) if t.is_floating_point() else t)(torch.as_tensor(a)))
    def _A_setup():
        B, S, D = 1, 2048, 640
        return {
            "x": _w((lambda *s: torch.randn(*s, dtype=torch.bfloat16) * 0.05)(B, S, D)),
            "wqkv": _w((lambda *s: torch.randn(*s, dtype=torch.bfloat16) * 0.05)(D, 3 * D)),
            "wo": _w((lambda *s: torch.randn(*s, dtype=torch.bfloat16) * 0.05)(D, D)),
        }
    _A_in = _A_setup()

    def _B_setup():
        B, S, D, F = 1, 2048, 640, 1728
        return {
            "x": _w((lambda *s: torch.randn(*s, dtype=torch.bfloat16) * 0.05)(B, S, D)),
            "w_gate": _w((lambda *s: torch.randn(*s, dtype=torch.bfloat16) * 0.05)(D, F)),
            "w_up": _w((lambda *s: torch.randn(*s, dtype=torch.bfloat16) * 0.05)(D, F)),
            "w_down": _w((lambda *s: torch.randn(*s, dtype=torch.bfloat16) * 0.05)(F, D)),
        }
    _B_in = _B_setup()

    return {
        "A_x": _A_in["x"],
        "A_wqkv": _A_in["wqkv"],
        "A_wo": _A_in["wo"],
        "B_x": _B_in["x"],
        "B_w_gate": _B_in["w_gate"],
        "B_w_up": _B_in["w_up"],
        "B_w_down": _B_in["w_down"],
    }

def reference(A_x, A_wqkv, A_wo, B_x, B_w_gate, B_w_up, B_w_down):
    def _A_ref(x, wqkv, wo):
        B, S, D = x.shape
        H = 32; Dh = D // H
        W, dil = 8, 2
        qkv = (lambda x, *d: x.permute(*d))((x @ wqkv).reshape(B, S, 3, H, Dh), 2, 0, 3, 1, 4)
        q, k, v = qkv[0], qkv[1], qkv[2]
        scale = Dh ** -0.5
        pos = torch.arange(S)
        off = torch.arange(W) * dil
        idx = pos[:, None] - off[None, :]
        mask = idx >= 0
        idx_c = torch.where(mask, idx, 0).reshape(-1)
        kg = k[:, :, idx_c, :].reshape(B, H, S, W, Dh)
        vg = v[:, :, idx_c, :].reshape(B, H, S, W, Dh)
        logits = torch.einsum("bhsd,bhswd->bhsw", q, kg) * scale
        logits = torch.where(mask[None, None, :, :], logits, -1e9)
        attn = _softmax(logits, axis=-1)
        o = torch.einsum("bhsw,bhswd->bhsd", attn, vg)
        return (lambda x, *d: x.permute(*d))(o, 0, 2, 1, 3).reshape(B, S, D) @ wo

    def _B_ref(x, w_gate, w_up, w_down):
        g = _silu(x @ w_gate)
        u = x @ w_up
        return (g * u) @ w_down

    x = A_x
    h = x + _A_ref(_layernorm(x, axis=-1), A_wqkv, A_wo)
    h2 = h + _B_ref(_layernorm(h, axis=-1), B_w_gate, B_w_up, B_w_down)
    return h2
```

```python
import re

_REG = re.compile(r'^(-|abs\()?([vas])(\d+|\[(\d+):(\d+)\])\)?$')
def regs_of(tok):
    tok = tok.strip()
    if tok in ('vcc',): return [('s', 106), ('s', 107)]
    if tok in ('exec',): return [('s', 126), ('s', 127)]
    if tok == 'm0': return [('s', 124)]
    if tok in ('vcc_lo',): return [('s', 106)]
    if tok in ('vcc_hi',): return [('s', 107)]
    m = _REG.match(tok)
    if not m: return []
    k = m.group(2)
    if m.group(4) is not None:
        return [(k, i) for i in range(int(m.group(4)), int(m.group(5))+1)]
    return [(k, int(m.group(3)))]

TRANS = ('v_exp_f32', 'v_log_f32', 'v_rcp_f32', 'v_rsq_f32', 'v_sqrt_f32', 'v_sin_f32', 'v_cos_f32', 'v_rcp_iflag_f32')

class Ins:
    __slots__ = ('text', 'mn', 'kind', 'dst', 'src', 'srcc', 'ws', 'dpp', 'lds', 'sdata', 'wide')
    def __init__(self, text):
        self.text = text
        t = text.split(';')[0].strip()
        self.dst = []; self.src = []; self.srcc = []; self.dpp = False; self.lds = False; self.sdata = []; self.wide = False
        self.ws = 1
        if not t or t.endswith(':') or t.startswith('.'):
            self.kind = 'label' if t.endswith(':') else 'none'; self.mn = ''; self.ws = 0; return
        parts = t.split(None, 1)
        mn = parts[0]; self.mn = mn
        rest = parts[1] if len(parts) > 1 else ''
        ops = []
        depth = 0; cur = ''
        for ch in rest:
            if ch == '[': depth += 1
            if ch == ']': depth -= 1
            if ch == ',' and depth == 0: ops.append(cur.strip()); cur = ''
            else: cur += ch
        if cur.strip(): ops.append(cur.strip())
        mods = ''
        if ops:
            last = ops[-1].split(None, 1)
            if len(last) > 1 and not last[0].endswith('('):
                ops[-1] = last[0]; mods = last[1]
        if mn == 's_nop':
            self.kind = 'nop'; self.ws = int(ops[0], 0) + 1; return
        if mn.startswith('v_mfma'):
            self.kind = 'mfma'
            self.dst = regs_of(ops[0]); self.src = regs_of(ops[1]) + regs_of(ops[2]); self.srcc = regs_of(ops[3]); return
        if mn.startswith('v_'):
            self.kind = 'valu'
            self.dpp = ('dpp' in mn) or ('row_' in mods) or ('quad_perm' in mods)
            if mn.startswith('v_cmp'):
                self.dst = regs_of(ops[0]); srcs = ops[1:]
                if mn.startswith('v_cmpx'): self.dst += regs_of('exec')
            elif 'permlane' in mn and 'swap' in mn:
                self.dst = regs_of(ops[0]) + regs_of(ops[1]); srcs = ops[0:2]
            elif mn.startswith(('v_add_co', 'v_sub_co', 'v_addc_co', 'v_subb_co')):
                self.dst = regs_of(ops[0]) + regs_of(ops[1]); srcs = ops[2:]
            else:
                self.dst = regs_of(ops[0]); srcs = ops[1:]
                if mn.startswith(('v_fmac', 'v_dot2c', 'v_pk_fmac')) or self.dpp: srcs = ops[0:]
            for o in srcs: self.src += regs_of(o)
            return
        if mn.startswith('ds_'):
            self.kind = 'ds'
            if mn.startswith(('ds_read', 'ds_bpermute', 'ds_permute', 'ds_swizzle')):
                self.dst = regs_of(ops[0])
                for o in ops[1:]: self.src += regs_of(o)
            else:
                for o in ops: self.src += regs_of(o)
            return
        if mn.startswith(('buffer_', 'global_')):
            self.kind = 'vmem'
            allm = rest
            self.lds = bool(re.search(r'\blds\b', allm)) or '_lds_' in mn
            if mn in ('buffer_inv', 'buffer_wbl2'): return
            if 'load' in mn and not self.lds:
                self.dst = regs_of(ops[0])
                for o in ops[1:]: self.src += regs_of(o)
            elif 'store' in mn:
                for o in ops: self.src += regs_of(o)
                d = ops[0] if mn.startswith('buffer_') else ops[1]
                self.sdata = regs_of(d); self.wide = len(self.sdata) >= 3
            else:
                for o in ops: self.src += regs_of(o)
                if self.lds: self.src += regs_of('m0')
            return
        if mn.startswith('s_'):
            self.kind = 'salu'
            if mn.startswith(('s_cmp', 's_bitcmp', 's_waitcnt', 's_barrier', 's_branch', 's_cbranch', 's_endpgm', 's_setprio', 's_sleep')):
                for o in ops: self.src += regs_of(o)
            else:
                self.dst = regs_of(ops[0]) if ops else []
                for o in ops[1:]: self.src += regs_of(o)
                if 'saveexec' in mn: self.dst += regs_of('exec')
            return
        raise ValueError('unknown instruction: ' + text)

def need(p, c):
    n = 0
    pd = set(p.dst)
    if p.kind == 'valu':
        vd = {r for r in pd if r[0] in 'va'}
        sd = {r for r in pd if r[0] == 's'}
        isdot = p.mn.startswith('v_dot')
        if c.kind == 'mfma' and vd & set(c.src + c.srcc): n = max(n, 3 if isdot else 2)
        if c.kind == 'valu':
            cs = set(c.src)
            if vd & cs:
                if p.mn.replace('_e32', '').replace('_e64', '') in TRANS and c.mn.replace('_e32', '') not in TRANS: n = max(n, 1)
                if 'permlane' in c.mn or c.dpp: n = max(n, 2)
                if c.mn.startswith(('v_readlane', 'v_readfirstlane')): n = max(n, 1)
            if isdot and (vd & (cs | set(c.dst))):
                if c.mn == p.mn:
                    ab = set(c.src) - set(c.dst) if 'dot2c' in c.mn else set(c.src[:len(c.src)-1])
                    if vd & ab: n = max(n, 3)
                else: n = max(n, 3)
            if sd & cs: n = max(n, 4 if c.mn.startswith(('v_readlane', 'v_writelane')) else 2)
            if ('s', 126) in sd: n = max(n, 5 if c.dpp else 4 if ('lane' in c.mn) else 2)
        if c.kind in ('vmem', 'ds'):
            if sd & set(c.src): n = max(n, 5)
            if isdot and vd & set(c.src): n = max(n, 3)
        if c.kind == 'mfma' and ('s', 126) in sd: n = max(n, 4)
        if c.kind == 'salu' and sd & set(c.src): n = max(n, 1)
    elif p.kind == 'mfma':
        passes = 8 if '32x32' in p.mn else 4
        big = 12 if passes == 8 else 8
        ov = 10 if passes == 8 else 6
        war = 7 if passes == 8 else 3
        if c.kind == 'mfma':
            if pd & set(c.src): n = max(n, big)
            if pd & set(c.srcc) and not (c.srcc == p.dst and c.mn == p.mn): n = max(n, ov)
            if pd & set(c.dst) and c.srcc != p.dst: n = max(n, ov)
        elif c.kind == 'valu':
            if pd & (set(c.src) | set(c.dst)): n = max(n, big)
            if set(p.srcc) & set(c.dst): n = max(n, war)
        elif c.kind in ('vmem', 'ds'):
            if pd & (set(c.src) | set(c.dst)): n = max(n, big)
    elif p.kind == 'salu':
        if ('s', 124) in pd and c.kind == 'vmem' and c.lds: n = max(n, 1)
    elif p.kind == 'vmem' and p.wide:
        if set(p.sdata) & set(c.dst): n = max(n, 2 if c.kind == 'valu' else 1)
    return n

class Asm:
    def __init__(self):
        self.lines = []
    def __call__(self, text):
        for l in text.strip('\n').split('\n'):
            l = l.strip()
            if l: self.lines.append(l)
    def finish(self):
        vm = []; lg = []; stage1 = []
        def emit_wait(nv, nl):
            parts = []
            if nv is not None:
                nv = min(nv, 63); parts.append(f'vmcnt({nv})'); del vm[:max(0, len(vm)-nv)]
            if nl is not None:
                nl = min(nl, 15); parts.append(f'lgkmcnt({nl})'); del lg[:max(0, len(lg)-nl)]
            if parts: stage1.append(Ins('s_waitcnt ' + ' '.join(parts)))
        for l in self.lines:
            if l.startswith('@waitvm'):
                tags = l.split()[1:]
                alsolg = 'LG0' in tags
                idx = max([i for i, (t, d) in enumerate(vm) if t in tags], default=-1)
                emit_wait(len(vm)-1-idx if idx >= 0 else None, 0 if (alsolg and lg) else None)
                continue
            ins = Ins(l)
            if ins.kind in ('label', 'none', 'nop'):
                stage1.append(ins); continue
            if ins.mn == 's_waitcnt':
                m = re.search(r'vmcnt\((\d+)\)', l)
                if m: del vm[:max(0, len(vm)-int(m.group(1)))]
                m = re.search(r'lgkmcnt\((\d+)\)', l)
                if m: del lg[:max(0, len(lg)-int(m.group(1)))]
                stage1.append(ins); continue
            touched = set(ins.src) | set(ins.srcc)
            wr = set(ins.dst)
            isload_vm = ins.kind == 'vmem'
            isload_ds = ins.kind == 'ds'
            iv = max([i for i, (t, d) in enumerate(vm) if d & (touched | (set() if isload_vm else wr))], default=-1)
            il = max([i for i, d in enumerate(lg) if d & (touched | (set() if isload_ds else wr))], default=-1)
            emit_wait(len(vm)-1-iv if iv >= 0 else None, len(lg)-1-il if il >= 0 else None)
            stage1.append(ins)
            if ins.kind == 'vmem':
                m = re.search(r'@tag=(\S+)', l)
                vm.append((m.group(1) if m else None, set(ins.dst)))
                assert len(vm) <= 63, 'vmcnt overflow at: ' + l
            elif ins.kind == 'ds':
                lg.append(set(ins.dst))
        out = []
        for ins in stage1:
            if ins.kind not in ('label', 'none', 'nop'):
                dist = 0; req = 0
                for p in reversed(out):
                    if dist >= 13: break
                    if p.kind not in ('label', 'none', 'nop'):
                        r = need(p, ins) - dist
                        if r > req: req = r
                    dist += p.ws
                while req > 0:
                    k = min(req, 16)
                    out.append(Ins(f's_nop {k-1}')); req -= k
            out.append(ins)
        return '\n'.join(('' if i.kind == 'label' or i.text.startswith('.') else '    ') + i.text for i in out)
```

```python
from asmlib import Asm
import layouts as L
from gen import v, a, s, srd, xg_reduce, header, footer, kd, f32, ONES

SLOT = 40960
XOFF = 30720
PACK_SC = ' sc1'
def gen_k1(name):
    A = Asm()
    sX, sW, sP, sD, sO = 8, 12, 16, 20, 24
    XA, WA = 2, 5
    RB = 13
    RC = 19
    PS, PR = 25, 26
    L16, ONE4 = 27, 28
    ST = 32
    PCS = 36
    ACC = 40
    FR = 124
    TM = 220
    def accQ(rt): return ACC + 4*rt
    def accK(rt): return ACC + 20 + 4*rt
    def accV(rt): return ACC + 40 + 4*rt
    QRO, KRO, VRO, QR0, KR0, VR0 = [ACC + 60 + 4*i for i in range(6)]
    def fX(kk, rt): return FR + kk*48 + 4*rt
    def fXo(kk): return FR + kk*48 + 20
    def fW(kk, i): return FR + kk*48 + 24 + 4*i
    header(A, name)
    A('''s_load_dwordx4 s[4:7], s[0:1], 0
    s_load_dwordx2 s[56:57], s[0:1], 16
    s_load_dwordx4 s[60:63], s[0:1], 32
    s_load_dwordx2 s[58:59], s[0:1], 48
    s_load_dwordx2 s[64:65], s[0:1], 72
    v_lshrrev_b32 v1, 6, v0
    v_and_b32 v0, 63, v0
    v_readfirstlane_b32 s28, v1
    s_and_b32 s29, s2, 7
    s_lshr_b32 s30, s2, 3
    s_lshl_b32 s29, s29, 2
    s_lshr_b32 s31, s30, 3
    s_add_u32 s29, s29, s31
    s_and_b32 s30, s30, 7''')
    t0, t1, t2, t3 = TM, TM+1, TM+2, TM+3
    A(f'''s_mul_i32 s31, s28, 20
    s_lshl_b32 s32, s29, 6
    s_sub_u32 s32, s32, 16
    v_lshrrev_b32 v{t0}, 3, v0
    v_add_u32 v{t0}, s31, v{t0}
    v_and_b32 v{t1}, 7, v0''')
    for i in range(3):
        A(f'''v_add_u32 v{t2}, {8*i}, v{t0}
        v_bfe_u32 v{t3}, v{t2}, 1, 3
        v_xor_b32 v{t3}, v{t3}, v{t1}
        v_add_u32 v{t2}, s32, v{t2}
        v_max_i32 v{t2}, 0, v{t2}
        v_mul_u32_u24 v{t2}, 1280, v{t2}
        v_lshl_add_u32 v{t2}, v{t3}, 4, v{t2}
        v_add_u32 v{XA+i}, {2048-1024*i}, v{t2}''')
    A(f'''s_lshr_b32 s31, s28, 1
    s_lshl_b32 s31, s31, 5
    s_and_b32 s33, s28, 1
    s_lshl_b32 s33, s33, 2
    s_add_u32 s31, s31, s33
    s_mul_i32 s31, s31, 3840
    s_mul_i32 s33, s30, 160
    s_add_u32 s31, s31, s33
    s_mov_b32 s33, 2185
    s_mov_b32 s34, 3840''')
    for i in range(8):
        A(f'''v_add_u32 v{t0}, {64*i}, v0
        v_mul_u32_u24 v{t1}, s33, v{t0}
        v_lshrrev_b32 v{t1}, 16, v{t1}
        v_mul_u32_u24 v{t2}, 30, v{t1}
        v_sub_u32 v{t0}, v{t0}, v{t2}
        v_lshrrev_b32 v{t2}, 2, v{t1}
        v_and_b32 v{t1}, 3, v{t1}
        v_lshl_add_u32 v{t1}, v{t2}, 3, v{t1}
        v_mul_u32_u24 v{t2}, 26, v{t0}
        v_lshrrev_b32 v{t2}, 8, v{t2}
        v_mul_u32_u24 v{t2}, 1120, v{t2}
        v_lshl_add_u32 v{t0}, v{t0}, 4, v{t2}
        v_mad_u32_u24 v{t0}, v{t1}, s34, v{t0}
        v_add_u32 v{t0}, s31, v{t0}
        v_add_u32 v{WA+i}, {3072-1024*(i&3)}, v{t0}''')
    A(f'''s_mul_i32 s34, s28, 7680
    s_mul_i32 s35, s28, 2560
    s_add_u32 s35, s35, {XOFF}
    s_mov_b64 s[36:37], -1
    s_cmp_eq_u32 s28, 0
    s_cselect_b32 s36, 0xffffff00, s36
    s_mov_b32 s38, 0
    s_mov_b32 s39, 0
    s_waitcnt lgkmcnt(0)''')
    srd(A, sX, 4, 5, -2048, 2621440+2048)
    srd(A, sW, 6, 7, -3072, 2457600+3072)
    def issue(st, slot):
        A(f's_add_u32 m0, s35, {slot*SLOT}\ns_mov_b64 exec, s[36:37]')
        A(f'buffer_load_dwordx4 v{XA}, s[{sX}:{sX+3}], s38 offen lds ; @tag=S{st}')
        A('s_mov_b64 exec, -1')
        A(f'buffer_load_dwordx4 v{XA+1}, s[{sX}:{sX+3}], s38 offen offset:1024 lds ; @tag=S{st}')
        A('s_mov_b32 exec_hi, 0')
        A(f'buffer_load_dwordx4 v{XA+2}, s[{sX}:{sX+3}], s38 offen offset:2048 lds ; @tag=S{st}')
        A(f's_add_u32 m0, s34, {slot*SLOT+4096}')
        A(f's_add_u32 s38, s38, 128')
        A(f'buffer_load_dwordx4 v{WA+7}, s[{sW}:{sW+3}], s39 offen offset:3072 lds ; @tag=S{st}')
        A('s_mov_b64 exec, -1')
        for i in range(4, 7):
            A(f'buffer_load_dwordx4 v{WA+i}, s[{sW}:{sW+3}], s39 offen offset:{(i&3)*1024} lds ; @tag=S{st}')
        A(f's_add_u32 m0, s34, {slot*SLOT}')
        for i in range(4):
            A(f'buffer_load_dwordx4 v{WA+i}, s[{sW}:{sW+3}], s39 offen offset:{i*1024} lds ; @tag=S{st}')
        A(f's_add_u32 s39, s39, {64*3840}')
    issue(0, 0); issue(1, 1); issue(2, 2)
    A(f'''s_cmp_ge_u32 s2, 108
    s_cbranch_scc1 L_pk_n640
    ; ---- GU job: m = id/54, r = id%54, strip = r>>1, hf = r&1
    s_cmp_ge_u32 s2, 54
    s_cselect_b32 s66, 1, 0
    s_cselect_b32 s46, s62, s60
    s_cselect_b32 s47, s63, s61
    s_mul_i32 s67, s66, 54
    s_sub_u32 s67, s2, s67
    s_and_b32 s68, s67, 1
    s_lshr_b32 s67, s67, 1
    s_mov_b32 s40, 3456
    s_mov_b32 s41, 4
    s_mov_b32 s42, 8
    s_mov_b32 s43, {32*3456}
    s_mov_b32 s44, 10
    s_mul_i32 s45, s68, {320*3456}
    s_lshl_b32 s69, s67, 7
    s_add_u32 s45, s45, s69
    s_mov_b32 s48, {640*3456}
    s_lshl_b32 s69, s67, 2
    s_add_u32 s69, s69, s28            ; Ft
    s_mul_i32 s70, s69, 9363
    s_lshr_b32 s70, s70, 16            ; c = Ft/7
    s_mul_i32 s71, s70, 7
    s_sub_u32 s71, s69, s71            ; slot
    s_cmp_eq_u32 s69, 107
    s_cselect_b32 s71, 6, s71
    s_mul_i32 s72, s66, 7
    s_add_u32 s71, s71, s72            ; 7m+slot
    s_mul_i32 s72, s70, 20
    s_mul_i32 s73, s68, 10
    s_add_u32 s72, s72, s73
    s_mul_i32 s72, s72, 14
    s_add_u32 s72, s72, s71
    s_lshl_b32 s49, s72, 10
    s_add_u32 s49, s49, {L.WS_PGU}
    s_mov_b32 s50, 14336
    s_mov_b32 s51, 0
    s_mov_b32 s52, 0
    s_mov_b32 s53, 0
    s_mul_i32 s72, s70, 14
    s_add_u32 s72, s72, s71
    s_lshl_b32 s72, s72, 6
    s_mul_i32 s73, s68, 14336
    s_add_u32 s54, s72, s73
    s_add_u32 s54, s54, {L.WS_CS}
    s_mov_b32 s55, 0
    s_branch L_pk_done
    L_pk_n640:
    s_mov_b32 s40, 1280
    s_mov_b32 s43, 128
    s_mov_b32 s44, 5
    s_mov_b32 s50, 0
    s_mov_b32 s51, 4
    s_mov_b32 s54, 0x80000000
    s_mov_b32 s55, 1
    s_cmp_ge_u32 s2, 148
    s_cbranch_scc1 L_pk_wd
    s_sub_u32 s66, s2, 108
    s_lshr_b32 s67, s66, 1             ; ks
    s_mov_b32 s46, s56
    s_mov_b32 s47, s57
    s_mov_b32 s48, {640*1280}
    s_mov_b32 s53, {20*5120-5120}
    s_mul_i32 s49, s67, 5120
    s_add_u32 s49, s49, {L.WS_PWO}
    s_mul_i32 s68, s67, 40
    s_mul_i32 s69, s67, 160
    s_sub_u32 s69, s69, {160*16-16}
    s_cmp_lt_u32 s67, 16
    s_cselect_b32 s68, s68, s69
    s_cselect_b32 s41, 20, 80
    s_cselect_b32 s42, 4, 20
    s_branch L_pk_n640b
    L_pk_wd:
    s_sub_u32 s66, s2, 148
    s_lshr_b32 s67, s66, 1             ; ks
    s_mov_b32 s46, s58
    s_mov_b32 s47, s59
    s_mov_b32 s48, {1728*1280}
    s_mov_b32 s53, {54*5120-5120}
    s_mul_i32 s49, s67, 5120
    s_add_u32 s49, s49, {L.WS_PWD}
    s_mul_i32 s69, s67, 9363
    s_lshr_b32 s69, s69, 16            ; i = ks/7
    s_mul_i32 s70, s69, 7
    s_sub_u32 s70, s67, s70            ; m
    s_lshl_b32 s68, s67, 1
    s_cmp_gt_u32 s70, 3
    s_cselect_b32 s71, 1, 0
    s_sub_u32 s68, s68, s71
    s_cmp_eq_u32 s69, 7
    s_cselect_b32 s71, 48, 112
    s_cmp_eq_u32 s70, 3
    s_cselect_b32 s41, s71, 16
    s_mov_b32 s42, 4
    s_lshl_b32 s68, s68, 4
    L_pk_n640b:
    s_and_b32 s66, s66, 1
    s_mul_i32 s45, s68, 1280
    s_mul_i32 s69, s66, 640
    s_add_u32 s45, s45, s69
    s_mul_i32 s52, s66, 20
    s_add_u32 s52, s52, s28
    L_pk_done:''')
    A(f'''s_lshr_b32 s66, s28, 1
    s_mul_i32 s66, s66, s41
    s_and_b32 s67, s28, 1
    s_lshl_b32 s67, s67, 1
    s_mul_i32 s67, s67, s42
    s_add_u32 s66, s66, s67
    v_lshrrev_b32 v{t0}, 5, v0
    v_mul_u32_u24 v{t0}, s42, v{t0}
    v_bfe_u32 v{t1}, v0, 3, 2
    v_add3_u32 v{t0}, v{t0}, v{t1}, s66
    v_mul_u32_u24 v{t0}, s40, v{t0}
    v_and_b32 v{t1}, 7, v0
    v_lshl_add_u32 v{PS}, v{t1}, 4, v{t0}
    s_mov_b32 s{sP}, s46
    s_mov_b32 s{sP+1}, s47
    s_mov_b32 s{sP+2}, s48
    s_mov_b32 s{sP+3}, 0x20000
    s_lshl_b32 s66, s28, 10
    s_add_u32 s66, s66, {3*SLOT}
    s_mov_b32 s67, s45''')
    for u in range(10):
        A(f'''s_add_u32 m0, s66, {u*4096}
        s_cmp_gt_u32 s44, {u}
        s_cselect_b32 s68, s67, 0x80000000
        buffer_load_dwordx4 v{PS}, s[{sP}:{sP+3}], s68 offen lds ; @tag=PK
        s_add_u32 s67, s67, s43''')
    A(f'''s_lshr_b32 s66, s28, 1
    s_lshl_b32 s66, s66, 6
    s_and_b32 s67, s28, 1
    s_lshl_b32 s67, s67, 3
    s_add_u32 s66, s66, s67
    s_lshl_b32 s67, s28, 5
    s_cmp_eq_u32 s55, 1
    s_cselect_b32 s66, s66, s67
    s_add_u32 s66, s66, {3*SLOT}
    s_add_u32 s67, s55, 3
    v_and_b32 v{t0}, 3, v0
    v_lshlrev_b32 v{t0}, s67, v{t0}
    v_lshrrev_b32 v{t1}, 2, v0
    v_lshl_add_u32 v{t0}, v{t1}, 7, v{t0}
    v_add_u32 v{PR}, s66, v{t0}
    v_lshlrev_b32 v{L16}, 4, v0''')
    srd(A, sD, 64, 65, None, L.WS_O)
    A(f'''v_and_b32 v{t0}, 15, v0
    v_lshrrev_b32 v{t1}, 4, v0
    v_lshrrev_b32 v{t2}, 1, v{t0}
    v_xor_b32 v{t2}, v{t2}, v{t1}
    v_lshlrev_b32 v{t2}, 4, v{t2}
    v_lshl_add_u32 v{t2}, v{t0}, 7, v{t2}
    v_add_u32 v{RB}, {XOFF}, v{t2}
    v_xor_b32 v{RB+1}, 64, v{RB}
    s_lshl_b32 s66, s28, 11
    s_add_u32 s66, s66, 2048
    v_add_u32 v{RB+2}, s66, v{RB}
    v_add_u32 v{RB+3}, s66, v{RB+1}
    v_lshrrev_b32 v{t0}, 2, v0
    v_mul_u32_u24 v{t0}, 480, v{t0}
    v_and_b32 v{t1}, 3, v0
    s_mul_i32 s66, s28, 40
    v_lshl_add_u32 v{t2}, v{t1}, 3, v{t0}
    v_add_u32 v{RB+4}, s66, v{t2}
    v_mul_u32_u24 v{t1}, 40, v{t1}
    v_add3_u32 v{RB+5}, v{t0}, v{t1}, 32''')
    for i in range(4): A(f'v_mov_b32 v{ONE4+i}, {ONES}\nv_mov_b32 v{ST+i}, 0')
    A(f'v_mov_b32 v{PCS}, 0\ns_mov_b32 s74, {ONES}')
    A(f'v_and_b32 v{t0}, 7, v0\nv_lshlrev_b32 v{TM+4}, 4, v{t0}\nv_add_u32 v{TM+5}, {2*SLOT}, v{TM+4}')
    A(f'ds_write_b128 v{TM+4}, {v(ONE4,4)} offset:{XOFF}')
    A(f'v_add_u32 v{TM+6}, {SLOT}, v{TM+4}')
    A(f'ds_write_b128 v{TM+6}, {v(ONE4,4)} offset:{XOFF}')
    A(f'ds_write_b128 v{TM+5}, {v(ONE4,4)} offset:{XOFF}')
    slot_of = {0:0, 1:1, 2:2, 3:0, 4:1, 5:2, 6:3, 7:0, 8:1, 9:2}
    issue_at = {1:[3], 2:[4], 3:[5], 4:[6, 7], 5:[8], 6:[9]}
    def reads(kk):
        out = []
        def tr(i):
            base = RC+4 if i < 3 else RC+5
            off = kk*15360 + (i % 3)*160
            out.append(f'ds_read_b64_tr_b16 {v(fW(kk,i),2)}, v{base} offset:{off}')
            out.append(f'ds_read_b64_tr_b16 {v(fW(kk,i)+2,2)}, v{base} offset:{off+7680}')
        tr(0)
        for rt in range(5): out.append(f'ds_read_b128 {v(fX(kk,rt),4)}, v{RC+kk} offset:{rt*2048}')
        tr(1); tr(2)
        out.append(f'ds_read_b128 {v(fXo(kk),4)}, v{RC+2+kk}')
        tr(3); tr(4); tr(5)
        return out
    def mfmas(kk, first):
        out = []
        def m(d, x, y): out.append(f'v_mfma_f32_16x16x32_bf16 {v(d,4)}, {v(x,4)}, {v(y,4)}, {"0" if first else v(d,4)}')
        for rt in range(5): m(accQ(rt), fW(kk,0), fX(kk,rt))
        for rt in range(5): m(accK(rt), fW(kk,1), fX(kk,rt))
        for rt in range(5): m(accV(rt), fX(kk,rt), fW(kk,2))
        m(QRO, fW(kk,3), fXo(kk)); m(QR0, fW(kk,3), fX(kk,0))
        m(KRO, fW(kk,4), fXo(kk)); m(KR0, fW(kk,4), fX(kk,0))
        m(VRO, fXo(kk), fW(kk,5)); m(VR0, fX(kk,0), fW(kk,5))
        return out
    def dots(kk):
        out = []
        for r in range(4):
            out.append(f'v_dot2c_f32_bf16 v{ST+2}, s74, v{fX(kk,0)+r}')
            out.append(f'v_dot2c_f32_bf16 v{ST+3}, v{fX(kk,0)+r}, v{fX(kk,0)+r}')
        for r in range(4):
            out.append(f'v_dot2c_f32_bf16 v{ST}, s74, v{fXo(kk)+r}')
            out.append(f'v_dot2c_f32_bf16 v{ST+1}, v{fXo(kk)+r}, v{fXo(kk)+r}')
        return out
    for st in range(10):
        slot = slot_of[st]
        A(f'@waitvm S{st} LG0')
        A('s_barrier')
        for x in issue_at.get(st, []): issue(x, slot_of[x])
        if st == 4:
            A(f'v_add_u32 v{TM+6}, {3*SLOT}, v{TM+4}')
            A(f'ds_write_b128 v{TM+6}, {v(ONE4,4)} offset:{XOFF}')
        for i in range(6): A(f'v_add_u32 v{RC+i}, {slot*SLOT}, v{RB+i}')
        for x in reads(0): A(x)
        r1 = reads(1)
        m0 = mfmas(0, st == 0); d0 = dots(0)
        for i, x in enumerate(m0):
            A(x)
            if i >= 3 and r1: A(r1.pop(0))
        while r1: A(r1.pop(0))
        m1 = mfmas(1, False); d1 = dots(1)
        dd = d0 + d1
        for i, x in enumerate(m1):
            A(x)
            if i < 13 or True:
                for _ in range(2 if i >= 5 else 1):
                    if dd and not (len(dd) <= 8 and i < 15): A(dd.pop(0))
        while dd: A(dd.pop(0))
        if st == 3:
            PF = TM + 8
            A('s_mov_b32 s66, s49\ns_mov_b32 s67, s52')
            for u in range(10):
                A(f'ds_read_b64_tr_b16 {v(FR+4*u,2)}, v{PR} offset:{u*4096}')
                A(f'ds_read_b64_tr_b16 {v(FR+4*u+2,2)}, v{PR} offset:{u*4096+2048}')
            for u in range(10):
                A(f'''s_mul_i32 s68, s67, 205
                s_lshr_b32 s68, s68, 10
                s_mul_i32 s68, s68, s53
                s_lshl_b32 s69, s67, 10
                s_add_u32 s68, s68, s69
                s_add_u32 s68, s68, s66
                s_cmp_gt_u32 s44, {u}
                s_cselect_b32 s68, s68, 0x80000000
                buffer_store_dwordx4 {v(FR+4*u,4)}, v{L16}, s[{sD}:{sD+3}], s68 offen{PACK_SC}
                s_add_u32 s66, s66, s50
                s_add_u32 s67, s67, s51''')
                for r in range(4): A(f'v_dot2c_f32_bf16 v{PCS}, s74, v{FR+4*u+r}')
            xg_reduce(A, [PCS], [TM+8], 'v_add_f32')
            A(f'''v_lshlrev_b32 v{TM+8}, 2, v0
            s_mov_b64 exec, 0xffff
            buffer_store_dword v{PCS}, v{TM+8}, s[{sD}:{sD+3}], s54 offen{PACK_SC}
            s_mov_b64 exec, -1''')
    EX = 3*SLOT
    F = FR
    xg_reduce(A, [ST, ST+1, ST+2, ST+3], [F, F+1, F+2, F+3], 'v_add_f32')
    A(f's_mov_b32 s66, {f32(1.0/640)}\ns_mov_b32 s67, {f32(1e-5)}')
    AO, A0 = F+4, F+6
    for (sr, ab) in ((ST, AO), (ST+2, A0)):
        A(f'''v_mul_f32 v{sr}, s66, v{sr}
        v_mul_f32 v{sr+1}, s66, v{sr+1}
        v_fma_f32 v{sr+1}, -v{sr}, v{sr}, v{sr+1}
        v_max_f32 v{sr+1}, 0, v{sr+1}
        v_add_f32 v{sr+1}, s67, v{sr+1}
        v_rsq_f32 v{ab}, v{sr+1}
        v_mul_f32 v{ab+1}, -v{sr}, v{ab}''')
    VT, VG, VH = F+8, F+9, F+10
    A(f'''v_and_b32 v{t0}, 15, v0
    v_lshlrev_b32 v{VT}, 3, v{t0}
    v_add_u32 v{VT}, {EX}, v{VT}
    v_lshrrev_b32 v{t1}, 4, v0
    v_lshlrev_b32 v{VG}, 5, v{t1}
    v_add_u32 v{VG}, {EX}, v{VG}
    v_lshlrev_b32 v{VH}, 3, v0
    v_add_u32 v{VH}, {EX}, v{VH}
    s_lshl_b32 s68, s28, 7
    s_add_u32 s68, s68, 128
    v_add_u32 v{t2}, s68, v{VT}
    ds_write_b64 v{t2}, {v(AO,2)}
    ds_write_b64 v{VT}, {v(A0,2)}
    v_add_u32 v{t2}, s68, v{VG}''')
    SGO, SG0 = F+12, F+20
    A(f'''ds_read_b128 {v(SGO,4)}, v{t2}
    ds_read_b128 {v(SGO+4,4)}, v{t2} offset:16
    ds_read_b128 {v(SG0,4)}, v{VG}
    ds_read_b128 {v(SG0+4,4)}, v{VG} offset:16''')
    CQ, CK, CQR, CKR, CV, CVR = F+28, F+32, F+36, F+40, F+44, F+45
    for (dst, src) in ((CQ, accQ(0)), (CK, accK(0)), (CQR, QR0), (CKR, KR0)):
        for r in range(4): A(f'v_mov_b32_dpp v{dst+r}, v{src+r} row_newbcast:0 row_mask:0xf bank_mask:0xf')
    A(f'v_lshlrev_b32 v{t0}, 2, v{t0}')
    A(f'ds_bpermute_b32 v{CV}, v{t0}, v{accV(0)}\nds_bpermute_b32 v{CVR}, v{t0}, v{VR0}')
    def corrT(src, cs, ab, dst):
        for r in range(4):
            A(f'v_mul_f32 v{TM+8+r}, v{ab+1}, v{cs+r}')
        for r in range(4):
            A(f'v_fma_f32 v{src+r}, v{ab}, v{src+r}, v{TM+8+r}')
        A(f'v_cvt_pk_bf16_f32 v{dst}, v{src}, v{src+1}\nv_cvt_pk_bf16_f32 v{dst+1}, v{src+2}, v{src+3}')
    def corrN(src, cs, sg, dst):
        for r in range(4):
            A(f'v_mul_f32 v{TM+8+r}, v{sg+2*r+1}, v{cs}')
        for r in range(4):
            A(f'v_fma_f32 v{src+r}, v{sg+2*r}, v{src+r}, v{TM+8+r}')
        A(f'v_cvt_pk_bf16_f32 v{dst}, v{src}, v{src+1}\nv_cvt_pk_bf16_f32 v{dst+1}, v{src+2}, v{src+3}')
    QF = F+46
    KF = QF+16
    VM = TM+12
    VR = TM+22
    PK = KF+20
    corrT(QRO, CQR, AO, PK); corrT(KRO, CKR, AO, PK+2); corrN(VRO, CVR, SGO, PK+4)
    A(f'''s_lshl_b32 s68, s28, 9
    v_add_u32 v{t2}, s68, v{VH}
    ds_write_b64 v{t2}, {v(PK,2)} offset:{1024+512}
    ds_write_b64 v{t2}, {v(PK+2,2)} offset:{4096+512}
    ds_write_b64 v{t2}, {v(PK+4,2)} offset:{7168+512}''')
    corrT(KR0, CKR, A0, KF+2); corrN(VR0, CVR, SG0, VR)
    corrT(accK(0), CK, A0, KF); corrN(accV(0), CV, SG0, VM)
    A('s_waitcnt lgkmcnt(0)\ns_barrier')
    AB = PK
    for rt in range(1, 5): A(f'ds_read_b64 {v(AB+2*(rt-1),2)}, v{VT} offset:{rt*128}')
    for rt in range(1, 5):
        A(f'ds_read_b64 {v(QF+4*(rt-1)+2,2)}, v{VH} offset:{1024+rt*512}')
        A(f'ds_read_b64 {v(KF+4*rt+2,2)}, v{VH} offset:{4096+rt*512}')
        A(f'ds_read_b64 {v(VR+2*rt,2)}, v{VH} offset:{7168+rt*512}')
    for rt in range(1, 5):
        sg = SGO if rt % 2 else SG0
        A(f'ds_read_b128 {v(sg,4)}, v{VG} offset:{rt*128}\nds_read_b128 {v(sg+4,4)}, v{VG} offset:{rt*128+16}')
        corrT(accQ(rt), CQ, AB+2*(rt-1), QF+4*(rt-1))
        corrT(accK(rt), CK, AB+2*(rt-1), KF+4*rt)
        corrN(accV(rt), CV, sg, VM+2*rt)
    A(f'''s_lshl_b32 s68, s28, 4
    s_lshl_b64 s[70:71], 0xffff, s68''')
    for rt in range(5):
        for r in (2, 3): A(f'v_cndmask_b32 v{KF+4*rt+r}, 0, v{KF+4*rt+r}, s[70:71]')
    BC, BP, BP1 = ACC, ACC+4, ACC+8
    A(f'''s_mov_b32 s68, {f32(-1e30)}
    v_and_b32 v{t0}, 15, v0
    v_lshrrev_b32 v{t1}, 4, v0
    v_lshlrev_b32 v{t1}, 2, v{t1}
    v_sub_u32 v{t0}, v{t1}, v{t0}
    v_mov_b32 v{t3}, s68
    s_cmp_eq_u32 s29, 0
    s_cselect_b64 s[72:73], -1, 0''')
    for r in range(4):
        A(f'''v_add_u32 v{t1}, {r}, v{t0}
        v_and_b32 v{t2}, 0x80000001, v{t1}
        v_cmp_eq_u32 vcc, 0, v{t2}
        v_cmp_ne_u32 s[76:77], 0, v{t1}
        s_and_b64 s[76:77], s[76:77], vcc
        v_cndmask_b32 v{BP+r}, v{t3}, 0, s[76:77]
        v_and_b32 v{t2}, 1, v{t1}
        v_cmp_eq_u32 vcc, 0, v{t2}
        s_andn2_b64 s[76:77], vcc, s[76:77]
        v_cndmask_b32 v{BC+r}, v{t3}, 0, s[76:77]
        v_cndmask_b32 v{BP1+r}, v{BP+r}, v{t3}, s[72:73]''')
    SS = ACC+12
    MX = ACC+44
    SM = ACC+52
    OO = ACC+60
    PP = F
    for q in range(4):
        rt = q+1
        A(f'v_mfma_f32_16x16x32_bf16 {v(SS+8*q,4)}, {v(KF+4*(rt-1),4)}, {v(QF+4*q,4)}, {v(BP1 if q==0 else BP,4)}')
        A(f'v_mfma_f32_16x16x32_bf16 {v(SS+8*q+4,4)}, {v(KF+4*rt,4)}, {v(QF+4*q,4)}, {v(BC,4)}')
    for q in range(4):
        b = SS+8*q
        A(f'''v_max3_f32 v{MX+q}, v{b}, v{b+1}, v{b+2}
        v_max3_f32 v{MX+4+q}, v{b+3}, v{b+4}, v{b+5}
        v_max3_f32 v{MX+q}, v{MX+q}, v{b+6}, v{b+7}
        v_max_f32 v{MX+q}, v{MX+q}, v{MX+4+q}''')
    xg_reduce(A, [MX+q for q in range(4)], [MX+4+q for q in range(4)], 'v_max_f32')
    A(f's_mov_b32 s68, {f32(20**-0.5*1.4426950408889634)}')
    for q in range(4): A(f'v_mul_f32 v{MX+q}, s68, v{MX+q}')
    for q in range(4):
        b = SS+8*q
        for i in range(8): A(f'v_fma_f32 v{b+i}, s68, v{b+i}, -v{MX+q}')
        for i in range(8): A(f'v_exp_f32 v{b+i}, v{b+i}')
        for i in range(4): A(f'v_cvt_pk_bf16_f32 v{PP+4*q+i}, v{b+2*i}, v{b+2*i+1}')
        A(f'v_mov_b32 v{SM+q}, 0')
        for i in range(4): A(f'v_dot2c_f32_bf16 v{SM+q}, s74, v{PP+4*q+i}')
    for q in range(4):
        A(f'v_mfma_f32_16x16x32_bf16 {v(SS+8*q,4)}, {v(VM+2*q,4)}, {v(PP+4*q,4)}, 0')
        A(f'v_mfma_f32_16x16x32_bf16 {v(SS+8*q+4,4)}, {v(VR+2*q,4)}, {v(PP+4*q,4)}, 0')
    xg_reduce(A, [SM+q for q in range(4)], [SM+4+q for q in range(4)], 'v_add_f32')
    for q in range(4): A(f'v_rcp_f32 v{SM+q}, v{SM+q}')
    A(f'''s_mul_i32 s66, s29, {4*20480}
    s_add_u32 s66, s66, {L.WS_O}''')
    srd(A, sO, 64, 65, 's66', 4*20480)
    A(f'''s_lshr_b32 s66, s28, 1
    s_lshl_b32 s67, s30, 1
    s_add_u32 s66, s66, s67
    s_lshl_b32 s66, s66, 10
    s_and_b32 s67, s28, 1
    s_lshl_b32 s67, s67, 3
    s_add_u32 s66, s66, s67
    s_lshr_b32 s67, s30, 1
    s_lshl_b32 s67, s67, 10
    s_and_b32 s68, s30, 1
    s_lshl_b32 s68, s68, 3
    s_add_u32 s67, s67, s68
    s_add_u32 s67, s67, 16384''')
    for q in range(4):
        b = SS+8*q
        for i in range(8): A(f'v_mul_f32 v{b+i}, v{SM+q}, v{b+i}')
        for i in range(4): A(f'v_cvt_pk_bf16_f32 v{PP+4*q+i}, v{b+2*i}, v{b+2*i+1}')
        A(f'buffer_store_dwordx2 {v(PP+4*q,2)}, v{L16}, s[{sO}:{sO+3}], s66 offen')
        A(f's_add_u32 s66, s66, 20480')
    A('s_mov_b64 exec, s[70:71]')
    for q in range(4):
        A(f'buffer_store_dwordx2 {v(PP+4*q+2,2)}, v{L16}, s[{sO}:{sO+3}], s67 offen')
        A(f's_add_u32 s67, s67, 20480')
    footer(A, name)
    return A.finish(), kd(name, 256, 256), 4*SLOT
```

```python
import numpy as np
S, D, F = 2048, 640, 1728
H, DH = 32, 20
KB = 1024
WS_PWO  = 0
WS_PWD  = WS_PWO + 8*20*5*KB
WS_PGU  = WS_PWD + 8*54*5*KB
WS_CS   = WS_PGU + 16*20*14*KB
WS_O    = WS_CS + 32*KB
WS_H    = WS_O + 128*20*KB
WS_ST   = WS_H + 128*20*KB
WS_ACT  = WS_ST + 128*KB
WS_END  = WS_ACT + 128*56*KB
ACT_KS = 56

def o_feature(ks, g, j):
    e, jj = j >> 2, j & 3
    if ks < 16:
        G, hp = ks >> 1, ks & 1
        h = 4*G + 2*hp + e
        return h*20 + 4*g + jj
    G = 2*(ks-16) + e
    return (4*G + g)*20 + 16 + jj

def chunk_slot_tile(c, slot):
    if c < 15: return 7*c + slot
    return {0:105, 1:106, 6:107}.get(slot)

def act_pos(c, slot):
    i, par = c >> 1, c & 1
    if slot == 6: return 7*i + 3, par
    return 7*i + 4*par + (slot >> 1), slot & 1

_act_tile = {}
for c in range(16):
    for sl in range(7):
        t = chunk_slot_tile(c, sl)
        if t is not None: _act_tile[act_pos(c, sl)] = t
def act_feature(ks, g, j):
    e, jj = j >> 2, j & 3
    return 16*_act_tile[(ks, e)] + 4*g + jj

def nperm_col(T, i):
    s, e = T >> 1, T & 1
    return 32*s + 8*(i >> 2) + 4*e + (i & 3)

def frag_index(kfun, nks):
    return np.array([[[kfun(ks, g, j) for j in range(8)] for g in range(4)] for ks in range(nks)])

NAT = lambda ks, g, j: 32*ks + 8*g + j

def pack_act(X, kfun, nks, nks_alloc=None):
    idx = frag_index(kfun, nks)
    R = X.shape[0]//16
    Xr = X.reshape(R, 16, -1)
    out = Xr[:, :, idx]
    out = out.transpose(0, 2, 3, 1, 4)
    if nks_alloc and nks_alloc > nks:
        pad = np.zeros((R, nks_alloc-nks, 4, 16, 8), X.dtype)
        out = np.concatenate([out, pad], 1)
    return np.ascontiguousarray(out)

def unpack_act(P, kfun, nks, K):
    idx = frag_index(kfun, nks)
    R = P.shape[0]
    X = np.zeros((R, 16, K), P.dtype)
    X[:, :, idx] = P[:, :nks].transpose(0, 3, 1, 2, 4)
    return X.reshape(R*16, K)

def pack_w(W, kfun, nks, cols):
    idx = frag_index(kfun, nks)
    cols = np.array(cols)
    out = W[idx[:, None, :, None, :], cols[None, :, None, :, None]]
    return np.ascontiguousarray(out)

def pack_wo(wo):
    return np.stack([pack_w(wo, o_feature, 20, [[nperm_col(5*cb+t, i) for i in range(16)] for t in range(5)]) for cb in range(8)])
def pack_wd(wd):
    return np.stack([pack_w(wd, act_feature, 54, [[nperm_col(5*cb+t, i) for i in range(16)] for t in range(5)]) for cb in range(8)])
def pack_gu(wg, wu):
    out = np.zeros((16, 20, 14, 4, 16, 8), wg.dtype)
    valid = np.zeros((16, 14), bool)
    for c in range(16):
        for sl in range(7):
            t = chunk_slot_tile(c, sl)
            if t is None: continue
            cols = [[16*t+i for i in range(16)]]
            out[c, :, sl] = pack_w(wg, NAT, 20, cols)[:, 0]
            out[c, :, 7+sl] = pack_w(wu, NAT, 20, cols)[:, 0]
            valid[c, sl] = valid[c, 7+sl] = True
    return out, valid
```

```python
import sys, os, struct
sys.path.insert(0, os.path.dirname(os.path.abspath(__file__)))
from asmlib import Asm
import layouts as L

PFX = 'sequential_preLN__sliding_local_dilated__swiglu_ffn__prompt'
def f32(x): return '0x%08x' % struct.unpack('<I', struct.pack('<f', x))[0]
ONES = '0x3f803f80'

def v(i, n=1): return f'v{i}' if n == 1 else f'v[{i}:{i+n-1}]'
def a(i, n=1): return f'a{i}' if n == 1 else f'a[{i}:{i+n-1}]'
def s(i, n=1): return f's{i}' if n == 1 else f's[{i}:{i+n-1}]'

def srd(A, d, base_lo, base_hi, add, nrec):
    if add is None:
        A(f's_mov_b32 s{d}, s{base_lo}\ns_mov_b32 s{d+1}, s{base_hi}')
    elif isinstance(add, int) and add < 0:
        A(f's_sub_u32 s{d}, s{base_lo}, {-add}\ns_subb_u32 s{d+1}, s{base_hi}, 0')
    else:
        A(f's_add_u32 s{d}, s{base_lo}, {add}\ns_addc_u32 s{d+1}, s{base_hi}, 0')
    A(f's_mov_b32 s{d+2}, {nrec}\ns_mov_b32 s{d+3}, 0x20000')

def xg_reduce(A, regs, tmps, op):
    for sw in ('v_permlane32_swap_b32', 'v_permlane16_swap_b32'):
        for r, t in zip(regs, tmps): A(f'v_mov_b32 {v(t)}, {v(r)}')
        for r, t in zip(regs, tmps): A(f'{sw} {v(r)}, {v(t)}')
        for r, t in zip(regs, tmps): A(f'{op} {v(r)}, {v(r)}, {v(t)}')

def header(A, name):
    A(f'.globl {name}\n.p2align 8\n.type {name},@function\n{name}:')
    A(f's_cmp_ge_u32 s2, 256\ns_cbranch_scc1 L_end_{name}')

def footer(A, name):
    A(f'L_end_{name}:\ns_endpgm')

def kd(name, nv, acc, ns=96):
    return f""".p2align 6
.amdhsa_kernel {name}
  .amdhsa_next_free_vgpr {nv}
  .amdhsa_next_free_sgpr {ns}
  .amdhsa_accum_offset {acc}
  .amdhsa_group_segment_fixed_size 0
  .amdhsa_kernarg_size 80
  .amdhsa_user_sgpr_count 2
  .amdhsa_user_sgpr_kernarg_segment_ptr 1
  .amdhsa_system_sgpr_workgroup_id_x 1
.end_amdhsa_kernel"""

def gen_n640(name, mode):
    A = Asm()
    wo = mode == 'wo'
    KS = 20 if wo else 54
    KSA = 20 if wo else L.ACT_KS
    NST = (KS + 3)//4
    NSLOT = 5 if wo else 7
    A_OFF = L.WS_O if wo else L.WS_ACT
    W_OFF = L.WS_PWO if wo else L.WS_PWD
    sA, sB, sRM, sH, sST = 8, 12, 16, 20, 24
    ACC, BF, AR, RES, TMP = 8, 28, 108, 220, 232
    header(A, name)
    A(f's_load_dwordx2 s[4:5], s[0:1], 72')
    A(f's_load_dwordx2 s[6:7], s[0:1], {0 if wo else 56}')
    A('''v_lshrrev_b32 v1, 6, v0
    v_and_b32 v0, 63, v0
    v_readfirstlane_b32 s28, v1
    s_and_b32 s29, s2, 7
    s_lshr_b32 s30, s2, 3
    s_lshl_b32 s29, s29, 2
    s_lshr_b32 s31, s30, 3
    s_add_u32 s29, s29, s31
    s_and_b32 s30, s30, 7
    v_lshlrev_b32 v2, 4, v0
    s_lshl_b32 s31, s29, 2
    s_add_u32 s31, s31, s28''')
    A(f'''s_mul_i32 s34, s28, 5120
    v_add_u32 v3, 61440, v2
    v_add_u32 v4, 122880, v2
    v_add_u32 v5, s34, v2
    v_add_u32 v6, 4096, v5
    s_mul_i32 s35, s31, {KSA*1024}
    s_add_u32 s35, s35, {A_OFF}
    s_mul_i32 s36, s30, {KS*5120}
    s_add_u32 s36, s36, {W_OFF}
    s_mul_i32 s37, s31, 20480
    s_add_u32 s38, s37, {L.WS_H}
    s_waitcnt lgkmcnt(0)''')
    srd(A, sA, 4, 5, 's35', KS*1024)
    srd(A, sB, 4, 5, 's36', KS*5120)
    A('s_mov_b32 s32, 0\ns_mov_b32 s33, 0')
    def issue(st):
        slot = st % NSLOT
        A(f's_add_u32 m0, s34, {slot*20480}')
        for kk in range(4):
            if 4*st+kk < KS:
                A(f'buffer_load_dwordx4 {v(AR+(slot*4+kk)*4,4)}, v2, s[{sA}:{sA+3}], s32 offen offset:{kk*1024} ; @tag=S{st}')
        for i in range(4):
            A(f'buffer_load_dwordx4 v5, s[{sB}:{sB+3}], s33 offen offset:{i*1024} lds ; @tag=S{st}')
        A(f's_add_u32 m0, s34, {slot*20480+4096}')
        A(f's_add_u32 s32, s32, 4096')
        A(f'buffer_load_dwordx4 v6, s[{sB}:{sB+3}], s33 offen lds ; @tag=S{st}')
        A(f's_add_u32 s33, s33, 20480')
    npro = min(NST, NSLOT)
    for st in range(npro): issue(st)
    srd(A, sRM, 6, 7, 's37', 20480)
    srd(A, sH, 4, 5, 's38', 20480)
    A('''v_and_b32 v7, 15, v0
    v_lshrrev_b32 v1, 4, v0
    v_mul_u32_u24 v7, 1280, v7
    v_lshl_add_u32 v7, v1, 4, v7
    s_mul_i32 s39, s30, 5''')
    for t in range(5):
        A(f'''s_add_u32 s50, s39, {t}
        s_lshr_b32 s51, s50, 1
        s_and_b32 s50, s50, 1
        s_lshl_b32 s50, s50, 3
        s_lshl_b32 s52, s51, 10
        s_add_u32 s{40+t}, s52, s50
        s_lshl_b32 s52, s51, 6
        s_add_u32 s{45+t}, s52, s50''')
    def resid_loads():
        for t in range(5):
            if wo: A(f'buffer_load_dwordx2 {v(RES+2*t,2)}, v7, s[{sRM}:{sRM+3}], s{45+t} offen')
            else:  A(f'buffer_load_dwordx2 {v(RES+2*t,2)}, v2, s[{sH}:{sH+3}], s{40+t} offen')
    if wo: resid_loads()
    first = True
    for st in range(NST):
        slot = st % NSLOT
        A(f'@waitvm S{st}')
        A('s_barrier')
        if st >= 1 and st + NSLOT - 1 < NST: issue(st + NSLOT - 1)
        if not wo and st == NST - 4: resid_loads()
        base = [2, 3, 4][slot//3]; boff = (slot % 3)*20480
        nk = min(4, KS - 4*st)
        def reads(kk):
            for t in range(5):
                A(f'ds_read_b128 {v(BF+(kk*5+t)*4,4)}, v{base} offset:{boff+kk*5120+t*1024}')
        for kk in range(min(3, nk)): reads(kk)
        for kk in range(nk):
            for t in range(5):
                c = '0' if first else v(ACC+4*t, 4)
                A(f'v_mfma_f32_16x16x32_bf16 {v(ACC+4*t,4)}, {v(BF+(kk*5+t)*4,4)}, {v(AR+(slot*4+kk)*4,4)}, {c}')
            first = False
            if kk == 0 and nk > 3: reads(3)
    P = TMP
    for t in range(5):
        r0, r1 = RES+2*t, RES+2*t+1
        A(f'''v_lshlrev_b32 v{P+10}, 16, v{r0}
        v_and_b32 v{P+11}, 0xffff0000, v{r0}
        v_lshlrev_b32 v{P+12}, 16, v{r1}
        v_and_b32 v{P+13}, 0xffff0000, v{r1}''')
        for r in range(4): A(f'v_add_f32 v{P+10+r}, v{P+10+r}, v{ACC+4*t+r}')
        A(f'v_cvt_pk_bf16_f32 v{P+2*t}, v{P+10}, v{P+11}\nv_cvt_pk_bf16_f32 v{P+2*t+1}, v{P+12}, v{P+13}')
        if wo: A(f'buffer_store_dwordx2 {v(P+2*t,2)}, v2, s[{sH}:{sH+3}], s{40+t} offen')
        else:  A(f'buffer_store_dwordx2 {v(P+2*t,2)}, v7, s[{sRM}:{sRM+3}], s{45+t} offen')
    if wo:
        S1, S2 = P+14, P+15
        A(f'v_mov_b32 v{S1}, 0\nv_mov_b32 v{S2}, 0\ns_mov_b32 s53, {ONES}')
        for i in range(10):
            A(f'v_dot2c_f32_bf16 v{S1}, s53, v{P+i}\nv_dot2c_f32_bf16 v{S2}, v{P+i}, v{P+i}')
        xg_reduce(A, [S1, S2], [P+16, P+17], 'v_add_f32')
        A(f'''s_lshl_b32 s50, s31, 10
        s_lshl_b32 s51, s30, 3
        s_add_u32 s50, s50, s51
        s_add_u32 s50, s50, {L.WS_ST}''')
        srd(A, sST, 4, 5, 's50', 1024)
        A(f'''v_lshlrev_b32 v1, 6, v0
        s_mov_b64 exec, 0xffff
        buffer_store_dwordx2 {v(S1,2)}, v1, s[{sST}:{sST+3}], 0 offen''')
    footer(A, name)
    return A.finish(), kd(name, 256, 256), NSLOT*20480

def gen_k3(name):
    A = Asm()
    sA, sB, sST, sCS, sAC = 8, 12, 16, 20, 24
    ACC = 16
    CS0, CS1 = 128, 184
    B1V = 240
    def bf(buf, c):
        if buf == 0: return a(160+4*c, 4)
        return a(216+4*c, 4) if c < 10 else v(B1V+4*(c-10), 4)
    def af(tt, ks): return a((tt*20+ks)*4, 4)
    def acc(tt, c): return ACC + (tt*14+c)*4
    header(A, name)
    A(f's_load_dwordx2 s[4:5], s[0:1], 72')
    A('''v_lshrrev_b32 v1, 6, v0
    v_and_b32 v0, 63, v0
    v_readfirstlane_b32 s28, v1
    s_and_b32 s29, s2, 7
    s_lshr_b32 s30, s2, 3
    s_lshl_b32 s29, s29, 1
    s_lshr_b32 s31, s30, 4
    s_add_u32 s29, s29, s31
    s_and_b32 s30, s30, 15
    v_lshlrev_b32 v2, 4, v0
    s_lshl_b32 s31, s29, 2
    s_add_u32 s31, s31, s28
    s_lshl_b32 s31, s31, 1''')
    A(f'''s_mul_i32 s34, s28, 7168
    v_add_u32 v3, 20480, v2
    v_add_u32 v4, 57344, v2
    v_add_u32 v5, 114688, v2
    v_add_u32 v6, s34, v2
    v_add_u32 v7, 4096, v6
    v_lshrrev_b32 v1, 4, v0
    v_lshlrev_b32 v8, 4, v1
    v_and_b32 v9, 15, v0
    v_lshl_add_u32 v9, v9, 6, v8
    s_mul_i32 s35, s31, 20480
    s_add_u32 s35, s35, {L.WS_H}
    s_mul_i32 s36, s30, 286720
    s_add_u32 s36, s36, {L.WS_PGU}
    s_lshl_b32 s37, s31, 10
    s_add_u32 s37, s37, {L.WS_ST}
    s_mul_i32 s38, s30, 896
    s_add_u32 s38, s38, {L.WS_CS}
    s_mul_i32 s39, s31, {L.ACT_KS*1024}
    s_add_u32 s39, s39, {L.WS_ACT}
    s_waitcnt lgkmcnt(0)''')
    srd(A, sA, 4, 5, 's35', 40960)
    srd(A, sB, 4, 5, 's36', 286720)
    A('s_mov_b32 s32, 0\ns_mov_b32 s33, 0')
    def issue_list(st):
        slot = st % 5
        out = [f's_add_u32 m0, s34, {slot*28672}']
        for kk in range(2):
            for tt in range(2):
                out.append(f'buffer_load_dwordx4 {af(tt,2*st+kk)}, v{2+tt}, s[{sA}:{sA+3}], s32 offen offset:{kk*1024} ; @tag=S{st}')
        for i in range(4):
            out.append(f'buffer_load_dwordx4 v6, s[{sB}:{sB+3}], s33 offen offset:{i*1024} lds ; @tag=S{st}')
        out.append(f's_add_u32 m0, s34, {slot*28672+4096}\ns_add_u32 s32, s32, 2048')
        for i in range(3):
            out.append(f'buffer_load_dwordx4 v7, s[{sB}:{sB+3}], s33 offen offset:{i*1024} lds ; @tag=S{st}')
        out.append(f's_add_u32 s33, s33, 28672')
        return out
    for st in range(5):
        for x in issue_list(st): A(x)
    srd(A, sST, 4, 5, 's37', 2048)
    srd(A, sCS, 4, 5, 's38', 14336+896)
    srd(A, sAC, 4, 5, 's39', 2*L.ACT_KS*1024)
    ST = 10
    def rd(ks, c):
        st, kk = ks//2, ks % 2
        slot = st % 5
        base = [2, 4, 5][slot//2]; off = (slot % 2)*28672 + kk*14336 + c*1024
        return f'ds_read_b128 {bf(ks%2, c)}, v{base} offset:{off}'
    A('@waitvm S0')
    A('s_barrier')
    for c in range(14): A(rd(0, c))
    small = []
    A('s_mov_b32 s40, 14336')
    for c in range(14):
        small.append(f'buffer_load_dwordx4 {v(CS0+4*c,4)}, v8, s[{sCS}:{sCS+3}], 0 offen offset:{c*64}')
        small.append(f'buffer_load_dwordx4 {v(CS1+4*c,4)}, v8, s[{sCS}:{sCS+3}], s40 offen offset:{c*64}')
    for ks in range(20):
        st = ks//2
        fill = []
        if ks % 2 == 1:
            if st + 1 < 10:
                A(f'@waitvm S{st+1} LG0')
                A('s_barrier')
            if st + 5 < 10: fill2 = issue_list(st+5)
            else: fill2 = []
        else:
            fill2 = []
        if ks + 1 < 20: fill = [rd(ks+1, c) for c in range(14)]
        if ks >= 11 and ks % 2 == 1 and small:
            fill2 = small[:10]; small = small[10:]
        seq = fill + fill2
        n = 0
        for c in range(14):
            for tt in range(2):
                cc = '0' if ks == 0 else v(acc(tt, c), 4)
                A(f'v_mfma_f32_16x16x32_bf16 {v(acc(tt,c),4)}, {bf(ks%2,c)}, {af(tt,ks)}, {cc}')
                if n < len(seq): A(seq[n]); n += 1
        assert n == len(seq)
        if ks == 16:
            A(f'buffer_load_dwordx4 v[10:13], v9, s[{sST}:{sST+3}], 0 offen')
    assert not small
    A(f'buffer_load_dwordx4 v[4:7], v9, s[{sST}:{sST+3}], 0 offen offset:1024')
    for i in range(56): A(f'v_add_f32 v{CS0+i}, v{CS0+i}, v{CS1+i}')
    T = CS1
    A(f'''s_lshr_b32 s41, s30, 1
    s_mul_i32 s41, s41, 7
    s_and_b32 s42, s30, 1
    s_add_u32 s43, s41, 3
    s_lshl_b32 s43, s43, 10
    s_lshl_b32 s44, s42, 3
    s_add_u32 s43, s43, s44
    s_lshl_b32 s42, s42, 2
    s_add_u32 s41, s41, s42
    s_lshl_b32 s41, s41, 10
    s_add_u32 s45, s41, {L.ACT_KS*1024}
    s_add_u32 s46, s43, {L.ACT_KS*1024}
    s_mov_b32 s47, {f32(1.0/640)}
    s_mov_b32 s48, {f32(1e-5)}
    s_mov_b32 s49, {f32(-1.4426950408889634)}''')
    for tt in range(2):
        sb = 10 if tt == 0 else 4
        NM, IV, CX = T+0, T+1, T+2
        A(f'v_add_f32 v{sb}, v{sb}, v{sb+2}\nv_add_f32 v{sb+1}, v{sb+1}, v{sb+3}')
        xg_reduce(A, [sb, sb+1], [sb+2, sb+3], 'v_add_f32')
        A(f'''v_mul_f32 v{NM}, s47, v{sb}
        v_mul_f32 v{IV}, s47, v{sb+1}
        v_fma_f32 v{IV}, -v{NM}, v{NM}, v{IV}
        v_max_f32 v{IV}, 0, v{IV}
        v_add_f32 v{IV}, s48, v{IV}
        v_rsq_f32 v{CX}, v{IV}
        v_sub_f32 v{NM}, 0, v{NM}
        v_mul_f32 v{CX}, s49, v{CX}''')
        OUT = T+4
        OUT = T + 4 + tt*16
        W = T + 40
        for sl in range(7):
            g0, u0 = acc(tt, sl), acc(tt, 7+sl)
            for r in range(4):
                A(f'v_fma_f32 v{g0+r}, v{NM}, v{CS0+4*sl+r}, v{g0+r}')
                A(f'v_fma_f32 v{u0+r}, v{NM}, v{CS0+28+4*sl+r}, v{u0+r}')
            for r in range(4): A(f'v_mul_f32 v{W+r}, v{CX}, v{g0+r}')
            for r in range(4): A(f'v_exp_f32 v{W+r}, v{W+r}')
            for r in range(4): A(f'v_mul_f32 v{u0+r}, v{g0+r}, v{u0+r}')
            for r in range(4): A(f'v_fma_f32 v{W+r}, v{W+r}, v{IV}, v{IV}')
            for r in range(4): A(f'v_rcp_f32 v{W+r}, v{W+r}')
            for r in range(4): A(f'v_mul_f32 v{u0+r}, v{u0+r}, v{W+r}')
            A(f'v_cvt_pk_bf16_f32 v{OUT+2*sl}, v{u0}, v{u0+1}\nv_cvt_pk_bf16_f32 v{OUT+2*sl+1}, v{u0+2}, v{u0+3}')
            if sl % 2 == 1:
                A(f'buffer_store_dwordx4 {v(OUT+2*sl-2,4)}, v2, s[{sAC}:{sAC+3}], s{41 if tt==0 else 45} offen offset:{(sl//2)*1024}')
            if sl == 6:
                A(f'buffer_store_dwordx2 {v(OUT+12,2)}, v2, s[{sAC}:{sAC+3}], s{43 if tt==0 else 46} offen')
    footer(A, name)
    return A.finish(), kd(name, 512, 256), 5*28672

def build(kernels, path):
    out = []
    ref = open('cdna_kernels/' + PFX + '.s.ref').read().split('\n')
    for l in ref:
        if l.startswith('; @launch') or l.startswith('; Override') or l.startswith('; grid='): continue
        if not l.startswith(';'): break
        out.append(l)
    for nm, (txt, k, lds) in kernels:
        out.append(f'; @launch kernel={nm} grid=(256,1,1) block=(256,1,1) lds={lds}')
    out.append('.amdgcn_target "amdgcn-amd-amdhsa--gfx950"\n.text')
    for nm, (txt, k, lds) in kernels: out.append(txt)
    out.append('.section .rodata,"a"')
    for nm, (txt, k, lds) in kernels: out.append(k)
    open(path, 'w').write('\n'.join(out) + '\n')

if __name__ == '__main__':
    from gen_k1 import gen_k1
    ks = [('k1_qkv_attn_kernel', gen_k1('k1_qkv_attn_kernel')),
          ('k2_wo_kernel', gen_n640('k2_wo_kernel', 'wo')),
          ('k3_gu_kernel', gen_k3('k3_gu_kernel')),
          ('k4_wd_kernel', gen_n640('k4_wd_kernel', 'wd'))]
    build(ks, sys.argv[1] if len(sys.argv) > 1 else 'cdna_kernels/' + PFX + '.s')
```
